```python
import torch

def _softmax(x, axis=-1):
    return torch.softmax(x, dim=axis)
def _gelu(x):
    return torch.nn.functional.gelu(x, approximate="tanh")
def _silu(x):
    return torch.nn.functional.silu(x)
def _sigmoid(x):
    return torch.sigmoid(x)
def _layernorm(x, axis=-1, eps=1e-5):
    m = x.mean(dim=axis, keepdim=True)
    v = x.var(dim=axis, keepdim=True, unbiased=False)
    return (x - m) / torch.sqrt(v + eps)
def _scatter_add(tgt, idx, src, axis=0):
    return tgt.clone().index_add_(axis, idx, src)
def _segment_sum(src, seg, n):
    out = torch.zeros((n,) + src.shape[1:], dtype=src.dtype)
    return out.index_add_(0, seg, src)
def _pad(x, pw):
    flat = tuple(v for pair in reversed(pw) for v in pair)
    return torch.nn.functional.pad(x, flat)

kernel_name = 'recurrent_scan__compressed_kv_cla__glu_gated_reglu__prompt'

def setup_inputs():

    _w = (lambda a: (lambda t: t.to(torch.bfloat16) if t.is_floating_point() else t)(torch.as_tensor(a)))
    def _A_setup():
        B, H, Sq, Sk, D, M = 1, 32, 2048, 2048, 128, 512
        Dc = 4 * D
        return {
            "x": _w((lambda *s: torch.randn(*s, dtype=torch.bfloat16) * 0.05)(B, Sq, M)),
            "c_kv": _w((lambda *s: torch.randn(*s, dtype=torch.bfloat16) * 1.6)(B, Sk, Dc)),
            "w_q": _w((lambda *s: torch.randn(*s, dtype=torch.bfloat16) * 1.6)(M, H, D) * (M ** -0.5)),
            "w_uk": _w((lambda *s: torch.randn(*s, dtype=torch.bfloat16) * 1.6)(Dc, H, D) * (Dc ** -0.5)),
            "w_uv": _w((lambda *s: torch.randn(*s, dtype=torch.bfloat16) * 1.6)(Dc, H, D) * (Dc ** -0.5)),
            "w_o": _w((lambda *s: torch.randn(*s, dtype=torch.bfloat16) * 1.6)(H, D, M) * ((H * D) ** -0.5)),
        }
    _A_in = _A_setup()

    def _B_setup():
        B, S, D, F = 1, 2048, 512, 1376
        return {
            "x": _w((lambda *s: torch.randn(*s, dtype=torch.bfloat16) * 0.05)(B, S, D)),
            "W_gate": _w((lambda *s: torch.randn(*s, dtype=torch.bfloat16) * 0.2)(D, F) * (2.0 / D) ** 0.5),
            "W_up": _w((lambda *s: torch.randn(*s, dtype=torch.bfloat16) * 0.2)(D, F) * (2.0 / D) ** 0.5),
            "W_down": _w((lambda *s: torch.randn(*s, dtype=torch.bfloat16) * 0.2)(F, D) * (1.0 / F) ** 0.5),
        }
    _B_in = _B_setup()

    return {
        "A_x": _A_in["x"],
        "A_c_kv": _A_in["c_kv"],
        "A_w_q": _A_in["w_q"],
        "A_w_uk": _A_in["w_uk"],
        "A_w_uv": _A_in["w_uv"],
        "A_w_o": _A_in["w_o"],
        "B_x": _B_in["x"],
        "B_W_gate": _B_in["W_gate"],
        "B_W_up": _B_in["W_up"],
        "B_W_down": _B_in["W_down"],
    }

def reference(A_x, A_c_kv, A_w_q, A_w_uk, A_w_uv, A_w_o, B_x, B_W_gate, B_W_up, B_W_down):
    def _A_ref(x, c_kv, w_q, w_uk, w_uv, w_o):
        B, Sq, M = x.shape[0], x.shape[1], x.shape[2]
        Sk = c_kv.shape[1]
        H, D = w_q.shape[1], w_q.shape[2]
        q = torch.einsum("bqm,mhd->bhqd", x, w_q)
        k = torch.einsum("bkc,chd->bhkd", c_kv, w_uk)
        v = torch.einsum("bkc,chd->bhkd", c_kv, w_uv)
        scores = torch.einsum("bhqd,bhkd->bhqk", q, k) * (D ** -0.5)
        off = Sk - Sq
        qi = torch.arange(Sq)[:, None]
        kj = torch.arange(Sk)[None, :]
        cmask = kj <= (qi + off)
        scores = torch.where(cmask[None, None], scores, -1e9)
        p = _softmax(scores, axis=-1)
        ctx = torch.einsum("bhqk,bhkd->bhqd", p, v)
        return torch.einsum("bhqd,hdm->bqm", ctx, w_o)

    def _B_ref(x, W_gate, W_up, W_down):
        gate = torch.einsum("bsd,df->bsf", x, W_gate)
        up = torch.einsum("bsd,df->bsf", x, W_up)
        gate = gate * (lambda x, dt: x.to(dt))(gate > 0, gate.dtype)
        h = gate * up
        return torch.einsum("bsf,fd->bsd", h, W_down)

    x = A_x
    xn = _layernorm(x, axis=-1)
    s = _A_ref(xn, A_c_kv, A_w_q, A_w_uk, A_w_uv, A_w_o)
    g = _silu(_B_ref(xn, B_W_gate, B_W_up, B_W_down))
    return x + s * g
```

```python
import re

REG_RE = re.compile(r'^(-|abs\()?\s*([vsa])(\d+)\)?$')
RNG_RE = re.compile(r'^(-)?([vsa])\[(\d+):(\d+)\]$')

def regs_of(tok):
    tok = tok.strip()
    m = REG_RE.match(tok)
    if m: return [m.group(2) + m.group(3)]
    m = RNG_RE.match(tok)
    if m: return [m.group(2) + str(i) for i in range(int(m.group(3)), int(m.group(4)) + 1)]
    if tok == 'vcc': return ['vcc']
    if tok in ('vcc_lo', 'vcc_hi'): return ['vcc']
    if tok == 'exec': return ['exec']
    if tok == 'm0': return ['m0']
    return []

TRANS = ('v_exp_f32', 'v_log_f32', 'v_rcp_f32', 'v_rsq_f32', 'v_sqrt_f32', 'v_sin_f32', 'v_cos_f32')

class Ins:
    __slots__ = ('text', 'op', 'rd', 'wr', 'kind', 'label', 'target', 'tokw', 'tokr', 'aw', 'nop', 'srcc', 'dpp',
                 'stdata', 'comment', 'passes', 'sgpr_const', 'lanesel')
    def __init__(self, text, tokw=(), tokr=(), comment=None):
        self.text = text; self.tokw = list(tokw); self.tokr = list(tokr); self.comment = comment
        self.aw = {}
        self.nop = 0
        self.label = None; self.target = None; self.srcc = []; self.dpp = False; self.stdata = []; self.passes = 0
        self.lanesel = []
        t = text.strip()
        if t.endswith(':'):
            self.kind = 'label'; self.label = t[:-1]; self.op = ''; self.rd = []; self.wr = []; return
        if t == '' or t.startswith(';') or t.startswith('.'):
            self.kind = 'pseudo'; self.op = ''; self.rd = []; self.wr = []; return
        sp = t.split(None, 1)
        op = sp[0]; rest = sp[1] if len(sp) > 1 else ''
        self.op = op
        ops = []; cur = ''; depth = 0
        for ch in rest:
            if ch == '[': depth += 1
            if ch == ']': depth -= 1
            if ch == ',' and depth == 0: ops.append(cur.strip()); cur = ''
            else: cur += ch
        if cur.strip(): ops.append(cur.strip())
        mods = []
        if ops:
            last = ops[-1].split()
            ops[-1] = last[0]; mods = last[1:]
        R = [regs_of(o) for o in ops]
        flat = lambda L: [x for l in L for x in l]
        rd = []; wr = []
        base = op
        for suf in ('_e32', '_e64', '_dpp', '_sdwa'):
            if base.endswith(suf): base = base[:-len(suf)]
        if op.startswith('v_mfma'):
            self.kind = 'mfma'; wr = R[0]; rd = R[1] + R[2] + R[3]; self.srcc = R[3]
            self.passes = 8 if '32x32x16' in op else 4
        elif op.startswith('v_cmp'):
            self.kind = 'valu'; wr = R[0]; rd = flat(R[1:])
            if op.startswith('v_cmpx'): wr = wr + ['exec']
        elif base in ('v_readfirstlane_b32', 'v_readlane_b32'):
            self.kind = 'valu'; wr = R[0]; rd = flat(R[1:])
            if base == 'v_readlane_b32': self.lanesel = R[2]
        elif base.startswith('v_permlane') and base.endswith('swap_b32'):
            self.kind = 'valu'; wr = R[0] + R[1]; rd = R[0] + R[1]
        elif base in ('v_fmac_f32', 'v_pk_fmac_f16', 'v_dot2c_f32_bf16'):
            self.kind = 'valu'; wr = R[0]; rd = flat(R)
        elif base in ('v_add_co_u32', 'v_sub_co_u32', 'v_subrev_co_u32', 'v_addc_co_u32', 'v_subb_co_u32', 'v_mad_u64_u32', 'v_div_scale_f32'):
            self.kind = 'valu'; wr = R[0] + R[1]; rd = flat(R[2:])
        elif op.startswith('v_'):
            self.kind = 'trans' if base in TRANS else 'valu'; wr = R[0]; rd = flat(R[1:])
            if op.endswith('_dpp') or any(m.startswith(('quad_perm', 'row_')) for m in mods):
                self.dpp = True; rd = rd + R[0]
        elif op.startswith('ds_read') or op.startswith('ds_bpermute') or op.startswith('ds_permute') or op.startswith('ds_swizzle'):
            self.kind = 'ds'; wr = R[0]; rd = flat(R[1:])
        elif op.startswith('ds_write'):
            self.kind = 'ds'; rd = flat(R)
        elif op.startswith('buffer_load') or op.startswith('global_load'):
            self.kind = 'vmem'
            if 'lds' in mods or '_lds_' in op:
                rd = flat(R) + ['m0']
            else:
                wr = R[0]; rd = flat(R[1:])
        elif op.startswith('buffer_store') or op.startswith('global_store') or op.startswith('buffer_atomic') or op.startswith('global_atomic'):
            self.kind = 'vmem'; rd = flat(R)
            if 'x4' in op or 'x3' in op:
                self.stdata = R[0] if op.startswith('buffer') else R[1]
            if 'atomic' in op and 'sc0' in mods:
                wr = R[0]
        elif op.startswith('buffer_wbl2') or op.startswith('buffer_inv'):
            self.kind = 'vmem'
        elif op.startswith('s_load') or op.startswith('s_memtime') or op.startswith('s_memrealtime') or op.startswith('s_buffer_load'):
            self.kind = 'smem'; wr = R[0]; rd = flat(R[1:])
        elif op == 's_waitcnt':
            self.kind = 'wait'
        elif op == 's_nop':
            self.kind = 'nop'
        elif op == 's_barrier':
            self.kind = 'barrier'
        elif op == 's_endpgm':
            self.kind = 'end'
        elif op == 's_branch' or op.startswith('s_cbranch'):
            self.kind = 'branch'; self.target = ops[0]
            if 'vcc' in op: rd = ['vcc']
            if 'exec' in op: rd = ['exec']
        elif op.startswith('s_cmp') or op.startswith('s_bitcmp'):
            self.kind = 'salu'; rd = flat(R)
        elif op in ('s_setprio', 's_sleep'):
            self.kind = 'salu'
        elif op.startswith('s_'):
            self.kind = 'salu'; wr = R[0]; rd = flat(R[1:])
            if 'saveexec' in op: wr = wr + ['exec']; rd = rd + ['exec']
            if op in ('s_addk_i32', 's_mulk_i32'): rd = rd + R[0]
        else:
            raise ValueError('unknown instruction: ' + text)
        self.rd = rd; self.wr = wr
    def states(self):
        if self.kind in ('label', 'pseudo'): return 0
        if self.kind == 'nop': return int(self.text.split()[1], 0) + 1
        return 1

WAIT_RE = re.compile(r'(vmcnt|lgkmcnt)\((\d+)\)')
MAXC = {'vm': 63, 'lgkm': 15}

class Prog:
    def __init__(self):
        self.ins = []
    def e(self, text, **kw):
        for line in text.split('\n'):
            line = line.split(';')[0].rstrip() if not line.strip().startswith(';') else line
            if line.strip() == '': continue
            self.ins.append(Ins(line.strip(), **kw))
    def need(self, *toks):
        i = Ins(''); i.tokr = list(toks); self.ins.append(i)
    def succs(self, idx, labels):
        i = self.ins[idx]
        if i.kind == 'end': return []
        if i.kind == 'branch':
            t = labels[i.target]
            if i.op == 's_branch': return [t]
            return [t, idx + 1]
        return [idx + 1] if idx + 1 < len(self.ins) else []
    def finalize(self, entry_labels):
        ins = self.ins
        labels = {i.label: n for n, i in enumerate(ins) if i.kind == 'label'}
        N = len(ins)
        succ = [self.succs(n, labels) for n in range(N)]
        pred = [[] for _ in range(N)]
        for n in range(N):
            for s in succ[n]: pred[s].append(n)
        def merge(a, b):
            if a is None: return b, True
            changed = False
            out = []
            for da, db in zip(a, b):
                d = dict(da)
                for k, v in db.items():
                    if k not in d or v < d[k]:
                        d[k] = v; changed = True
                out.append(d)
            return tuple(out), changed
        def transfer(i, st):
            vm, lg = dict(st[0]), dict(st[1])
            def do_wait(cnt, n):
                nonlocal vm, lg
                if cnt == 'vm': vm = {k: v for k, v in vm.items() if v < n}
                elif n == 0: lg = {}
                else: lg = {k: v for k, v in lg.items() if v < n}
            touched = list(i.rd) + list(i.tokr)
            for r in i.wr:
                if r in vm and i.kind != 'vmem': touched.append(r)
                if r in lg and (i.kind != 'ds' or lg[r] < 0): touched.append(r)
            for r in touched:
                if r in vm:
                    n = min(vm[r], MAXC['vm'])
                    if 'vm' not in i.aw or n < i.aw['vm']: i.aw['vm'] = n
                if r in lg:
                    n = max(0, min(lg[r], MAXC['lgkm']))
                    if 'lgkm' not in i.aw or n < i.aw['lgkm']: i.aw['lgkm'] = n
            for c, n in i.aw.items(): do_wait(c, n)
            if i.kind == 'wait':
                for c, n in WAIT_RE.findall(i.text):
                    do_wait('vm' if c == 'vmcnt' else 'lgkm', int(n))
            if i.kind == 'vmem':
                vm = {k: v + 1 for k, v in vm.items() if v + 1 <= 64}
                for r in list(i.wr) + i.tokw: vm[r] = 0
            elif i.kind == 'ds':
                lg = {k: (v + 1 if v >= 0 else v) for k, v in lg.items() if v + 1 <= 16}
                for r in list(i.wr) + i.tokw: lg[r] = 0
            elif i.kind == 'smem':
                for r in i.wr: lg[r] = -1
            return (vm, lg)
        for rounds in range(50):
            st_in = [None] * N
            work = [labels[l] for l in entry_labels]
            for w in work: st_in[w] = ({}, {})
            before = [dict(i.aw) for i in ins]
            inq = set(work)
            while work:
                n = work.pop(); inq.discard(n)
                out = transfer(ins[n], st_in[n])
                for s in succ[n]:
                    m, ch = merge(st_in[s], out)
                    if ch:
                        st_in[s] = m
                        if s not in inq: work.append(s); inq.add(s)
            if all(b == i.aw for b, i in zip(before, ins)): break
        else:
            raise RuntimeError('waitcnt did not converge')
        self.reach = [s is not None for s in st_in]
        def is_v(r): return r[0] in 'va' and r not in ('vcc',)
        def need_dist(p, c):
            d = 0
            pw = set(p.wr)
            pv = p.kind in ('valu', 'trans')
            cv = c.kind in ('valu', 'trans')
            if pv:
                vw = {r for r in pw if is_v(r)}
                sw = pw - vw
                if c.kind == 'mfma' and vw & set(c.rd): d = max(d, 2)
                if c.kind == 'mfma' and 'exec' in pw: d = max(d, 4)
                if p.kind == 'trans' and c.kind in ('valu', 'mfma', 'vmem', 'ds') and vw & set(c.rd): d = max(d, 1)
                if cv and c.dpp and vw & set(c.rd): d = max(d, 2)
                if cv and c.dpp and 'exec' in pw: d = max(d, 5)
                if cv and c.op.startswith(('v_readfirstlane', 'v_readlane')) and vw & set(c.rd): d = max(d, 1)
                if cv and c.op.startswith('v_permlane') and vw & set(c.rd): d = max(d, 2)
                if cv and sw & set(c.rd): d = max(d, 2)
                if cv and sw & set(c.lanesel): d = max(d, 4)
                if c.kind == 'vmem' and sw & set(c.rd): d = max(d, 5)
                if c.kind in ('salu', 'branch', 'smem') and sw & set(c.rd): d = max(d, 1 if c.kind == 'branch' else 2)
            if p.kind == 'salu' and 'm0' in pw and c.kind == 'vmem' and 'm0' in c.rd: d = max(d, 1)
            if p.kind == 'mfma':
                big = {4: 8, 8: 12}[p.passes]; ovl = {4: 6, 8: 10}[p.passes]; war = {4: 3, 8: 7}[p.passes]
                if c.kind == 'mfma':
                    ab = set(c.rd) - set(c.srcc) if True else set()
                    nab = len(c.rd) - len(c.srcc)
                    ab = set(c.rd[:nab])
                    if pw & ab: d = max(d, big)
                    if pw & set(c.srcc):
                        if not (c.srcc == p.wr and c.passes == p.passes): d = max(d, ovl)
                    if pw & set(c.wr) and not (pw & set(c.srcc)):
                        d = max(d, ovl if c.wr != p.wr else 0)
                elif c.kind in ('valu', 'trans', 'vmem', 'ds'):
                    if pw & (set(c.rd) | set(c.wr)): d = max(d, big)
                    if cv and set(p.srcc) & set(c.wr): d = max(d, war)
            if p.kind == 'vmem' and p.stdata and set(p.stdata) & set(c.wr):
                d = max(d, 2 if cv else 1)
            return d
        MAXD = 12
        def extra(i):
            return i.nop + (1 if i.aw else 0)
        changed = True; it = 0
        while changed:
            changed = False; it += 1
            if it > 20: raise RuntimeError('hazard loop')
            for n in range(N):
                c = ins[n]
                if c.kind in ('label', 'pseudo', 'wait', 'nop', 'barrier', 'end') or not self.reach[n]: continue
                worst = 0
                stack = [(p, extra(c)) for p in pred[n]]
                seen = {}
                while stack:
                    p, dist = stack.pop()
                    if dist >= MAXD: continue
                    if p in seen and seen[p] <= dist: continue
                    seen[p] = dist
                    pi = ins[p]
                    if pi.kind not in ('label', 'pseudo'):
                        nd = need_dist(pi, c)
                        if nd > dist: worst = max(worst, nd - dist)
                    nd2 = dist + pi.states() + extra(pi)
                    for q in pred[p]: stack.append((q, nd2))
                if worst > 0:
                    c.nop += worst; changed = True
    def text(self):
        out = []
        for i in self.ins:
            if i.aw:
                w = []
                if 'vm' in i.aw: w.append('vmcnt(%d)' % i.aw['vm'])
                if 'lgkm' in i.aw: w.append('lgkmcnt(%d)' % i.aw['lgkm'])
                out.append('    s_waitcnt ' + ' '.join(w))
            k = i.nop
            while k > 0:
                m = min(k, 16); out.append('    s_nop %d' % (m - 1)); k -= m
            if i.kind == 'label': out.append(i.text)
            elif i.text: out.append('    ' + i.text)
        return '\n'.join(out) + '\n'

class Regs:
    def __init__(self, prefix, start, limit):
        self.p = prefix; self.n = start; self.limit = limit; self.hi = start
    def alloc(self, cnt=1, align=1):
        self.n = (self.n + align - 1) // align * align
        r = self.n; self.n += cnt
        assert self.n <= self.limit, 'out of %s regs: %d' % (self.p, self.n)
        self.hi = max(self.hi, self.n)
        return r

def vr(b, n=1):
    return 'v%d' % b if n == 1 else 'v[%d:%d]' % (b, b + n - 1)
def sr(b, n=1):
    return 's%d' % b if n == 1 else 's[%d:%d]' % (b, b + n - 1)
```

```python
from asmlib import *

KV_OFF = 0
KV_HEAD = 33 * 32768
XN_OFF = 0x2100000
AF_OFF = 0x2300000
AF_QT = 342 * 1024
WS_USED = 0x3860000
MF = 'v_mfma_f32_32x32x16_bf16'

def srd(p, d, base, nrec):
    p.e(f's_mov_b32 s{d}, s{base}')
    p.e(f's_and_b32 s{d+1}, s{base+1}, 0xffff')
    if isinstance(nrec, str): p.e(f's_mov_b32 s{d+2}, {nrec}')
    else: p.e(f's_mov_b32 s{d+2}, {nrec:#x}')
    p.e(f's_mov_b32 s{d+3}, 0x20000')

def kd(name, vgpr, sgpr=102):
    acc = (vgpr + 3) // 4 * 4
    return f""".section .rodata,"a"
.p2align 6
.amdhsa_kernel {name}
  .amdhsa_next_free_vgpr {vgpr}
  .amdhsa_next_free_sgpr {sgpr}
  .amdhsa_accum_offset {acc}
  .amdhsa_group_segment_fixed_size 0
  .amdhsa_kernarg_size 104
  .amdhsa_user_sgpr_count 2
  .amdhsa_user_sgpr_kernarg_segment_ptr 1
  .amdhsa_system_sgpr_workgroup_id_x 1
  .amdhsa_float_denorm_mode_32 3
.end_amdhsa_kernel
"""

def header(name):
    return f""".text
.globl {name}
.p2align 8
.type {name},@function
"""

def wave_sum(p, x, t):
    for ctl in ('quad_perm:[1,0,3,2]', 'quad_perm:[2,3,0,1]', 'row_half_mirror', 'row_mirror'):
        p.e(f'v_add_f32_dpp v{x}, v{x}, v{x} {ctl} row_mask:0xf bank_mask:0xf')
    p.e(f'v_mov_b32 v{t}, v{x}')
    p.e(f'v_permlane16_swap_b32 v{x}, v{t}')
    p.e(f'v_add_f32 v{x}, v{x}, v{t}')
    p.e(f'v_mov_b32 v{t}, v{x}')
    p.e(f'v_permlane32_swap_b32 v{x}, v{t}')
    p.e(f'v_add_f32 v{x}, v{x}, v{t}')

def rne_bf16(p, x):
    p.e(f'v_cvt_pk_bf16_f32 v{x}, v{x}, v{x}')
    p.e(f'v_lshlrev_b32 v{x}, 16, v{x}')

STAMP_OFF = 0x4000000
class Stamps:
    def __init__(self, p, on, base=64, kidx=0):
        self.p = p; self.on = on; self.base = base; self.n = 0; self.kidx = kidx
    def stamp(self):
        if not self.on: return
        b = self.base + 2 * self.n; self.n += 1
        assert b + 1 < 100
        self.p.e(f's_memtime s[{b}:{b+1}]')
    def rt(self):
        if not self.on: return
        b = self.base + 2 * self.n; self.n += 1
        self.p.e(f's_memrealtime s[{b}:{b+1}]')
    def flush(self, s_ws_ptr, sW, vt, vt2, srd_at=60):
        if not self.on: return
        p = self.p
        p.e('s_waitcnt vmcnt(0)')
        self.stamp(); self.rt()
        srd(p, srd_at, s_ws_ptr, 0x10000000)
        p.e('s_mov_b64 exec, 1')
        p.e(f's_lshl_b32 s58, s2, 3')
        p.e(f's_add_u32 s58, s58, s{sW}')
        p.e(f's_lshl_b32 s58, s58, 7')
        p.e(f's_add_u32 s58, s58, {STAMP_OFF + self.kidx * 0x100000}')
        p.e(f'v_mov_b32 v{vt2}, 0')
        for i in range(self.n):
            p.e(f'v_mov_b32 v{vt}, s{self.base + 2*i}')
            p.e(f'buffer_store_dword v{vt}, v{vt2}, s[{srd_at}:{srd_at+3}], s58 offen offset:{4*i}')
```

```python
from common import *

def gen_k1(STORE_MOD='', STAMP=False):
    p = Prog()
    T = Stamps(p, STAMP)
    name = 'k1_kernel'
    V = Regs('v', 1, 256)
    lane = V.alloc(); t0 = V.alloc(); t1 = V.alloc(); t2 = V.alloc()
    vCd = V.alloc(4); vWd = V.alloc(); vWr = V.alloc(4); vCr = V.alloc(4); vSt = V.alloc(2)
    RING = 6; DIST = 6
    st = V.alloc(16, 4)
    wf = V.alloc(4 * RING, 4)
    acc = V.alloc(64, 4)
    cf = V.alloc(128, 4)
    sW, sHH, sRB, sM0W, sM0C, sT, sKo, sVo = 3, 4, 5, 6, 7, 40, 41, 42
    S_C, S_K, S_V, S_WS, S_X = 8, 12, 16, 20, 24
    WSLOT = lambda s: (s % 4) * 16384
    CBASE = 65536
    p.e(f'{name}:')
    p.e('s_cmp_ge_u32 s2, 256')
    p.e('s_cbranch_scc1 k1_end')
    T.rt(); T.stamp()
    p.e('s_load_dwordx4 s[28:31], s[0:1], 0')
    p.e('s_load_dwordx4 s[32:35], s[0:1], 24')
    p.e('s_load_dwordx2 s[36:37], s[0:1], 96')
    p.e(f'v_and_b32 v{lane}, 63, v0')
    p.e(f'v_lshrrev_b32 v{t0}, 6, v0')
    p.e(f'v_readfirstlane_b32 s{sW}, v{t0}')
    p.e(f's_and_b32 s{sHH}, s2, 7')
    p.e(f's_lshl_b32 s{sHH}, s{sHH}, 2')
    p.e(f's_bfe_u32 s{sT}, s2, 0x20003')
    p.e(f's_add_u32 s{sHH}, s{sHH}, s{sT}')
    p.e(f's_lshr_b32 s{sRB}, s2, 5')
    p.e(f's_lshl_b32 s{sT}, s2, 3')
    p.e(f's_add_u32 s{sT}, s{sT}, s{sW}')
    p.e(f's_lshl_b32 s43, s{sT}, 10')
    p.e(f'v_lshlrev_b32 v{vSt}, 4, v{lane}')
    p.e(f'v_add_u32 v{vSt+1}, 0x1000, v{vSt}')
    p.e(f'v_lshrrev_b32 v{t0}, 4, v{lane}')
    p.e(f'v_bfe_u32 v{t1}, v{lane}, 2, 2')
    p.e(f'v_xor_b32 v{t1}, v{t1}, v{t0}')
    p.e(f'v_lshlrev_b32 v{t1}, 6, v{t1}')
    p.e(f'v_lshl_add_u32 v{t1}, v{t0}, 13, v{t1}')
    p.e(f'v_and_b32 v{t2}, 3, v{lane}')
    p.e(f'v_lshl_add_u32 v{t1}, v{t2}, 4, v{t1}')
    p.e(f's_lshl_b32 s44, s{sHH}, 8')
    p.e(f's_lshl_b32 s45, s{sW}, 16')
    p.e(f's_add_u32 s44, s44, s45')
    p.e(f'v_add_u32 v{vWd}, s44, v{t1}')
    p.e(f's_lshl_b32 s44, s{sRB}, 18')
    p.e(f's_lshl_b32 s45, s{sW}, 15')
    p.e(f's_add_u32 s44, s44, s45')
    p.e(f'v_and_b32 v{t1}, 7, v{lane}')
    p.e(f'v_xor_b32 v{t1}, v{t1}, v{t0}')
    p.e(f'v_lshrrev_b32 v{t2}, 3, v{lane}')
    p.e(f'v_lshlrev_b32 v{t2}, 10, v{t2}')
    p.e(f'v_add_u32 v{t2}, s44, v{t2}')
    p.e(f'v_lshl_add_u32 v{vCd}, v{t1}, 4, v{t2}')
    p.e(f'v_xor_b32 v{t1}, 4, v{t1}')
    p.e(f'v_lshl_add_u32 v{vCd+1}, v{t1}, 4, v{t2}')
    p.e(f'v_add_u32 v{vCd+1}, 0x2000, v{vCd+1}')
    p.e(f'v_add_u32 v{vCd+2}, 0x4000, v{vCd}')
    p.e(f'v_add_u32 v{vCd+3}, 0x4000, v{vCd+1}')
    p.e(f's_lshl_b32 s{sM0W}, s{sW}, 11')
    p.e(f's_mul_i32 s{sM0C}, s{sW}, 12288')
    p.e(f's_add_u32 s{sM0C}, s{sM0C}, {CBASE}')
    srd(p, S_X, 28, 0x200000)
    xr = wf
    p.e(f'buffer_load_dwordx4 {vr(st,4)}, v{vSt}, s[{S_X}:{S_X+3}], s43 offen')
    srd(p, S_C, 30, 0x200000)
    srd(p, S_K, 32, 0x400000)
    def dma_stage(t):
        S = t % 8
        if t < 8:
            for j in range(4):
                p.e(f's_add_u32 m0, s{sM0C}, {(t%3)*4096 + j*1024}')
                if j == 0: p.e(f's_mov_b32 s{sT}, {S*128}')
                p.e(f'buffer_load_dwordx4 v{vCd+j}, s[{S_C}:{S_C+3}], s{sT} offen lds', tokw=[f'C{t}'])
        srdw = S_K if t < 8 else S_V
        for i in range(2):
            p.e(f's_add_u32 m0, s{sM0W}, {WSLOT(t) + i*1024}')
            p.e(f's_mov_b32 s{sT}, {S*64*8192 + i*32768}')
            p.e(f'buffer_load_dwordx4 v{vWd}, s[{srdw}:{srdw+3}], s{sT} offen lds', tokw=[f'W{t}'])
    p.e(f's_lshr_b32 s46, s43, 10')
    dma_stage(0); dma_stage(1); dma_stage(2)
    srd(p, S_V, 34, 0x400000)
    srd(p, S_WS, 36, WS_USED)
    p.e(f'v_bfe_u32 v{t0}, v{lane}, 2, 2')
    p.e(f'v_lshrrev_b32 v{t1}, 5, v{lane}')
    p.e(f'v_lshl_add_u32 v{t1}, v{t1}, 3, v{t0}')
    p.e(f'v_lshlrev_b32 v{t1}, 8, v{t1}')
    p.e(f'v_bfe_u32 v{t2}, v{lane}, 4, 1')
    p.e(f'v_lshl_add_u32 v{t1}, v{t2}, 5, v{t1}')
    p.e(f'v_and_b32 v{t2}, 3, v{lane}')
    p.e(f'v_lshl_add_u32 v{t1}, v{t2}, 3, v{t1}')
    p.e(f'v_lshl_add_u32 v{vWr}, v{t0}, 6, v{t1}')
    for dt in range(1, 4):
        p.e(f'v_xor_b32 v{vWr+dt}, {dt*64}, v{vWr}')
    p.e(f'v_and_b32 v{t0}, 31, v{lane}')
    p.e(f'v_bfe_u32 v{t1}, v{lane}, 1, 3')
    p.e(f'v_lshrrev_b32 v{t2}, 5, v{lane}')
    p.e(f'v_xor_b32 v{t1}, v{t1}, v{t2}')
    p.e(f'v_lshlrev_b32 v{t1}, 4, v{t1}')
    p.e(f'v_lshl_add_u32 v{t1}, v{t0}, 7, v{t1}')
    p.e(f'v_add_u32 v{vCr}, s{sM0C}, v{t1}')
    for j in range(1, 4):
        p.e(f'v_xor_b32 v{vCr+j}, {j*32}, v{vCr}')
    p.e(f's_lshl_b32 s44, s{sRB}, 3')
    p.e(f's_add_u32 s44, s44, s{sW}')
    p.e(f's_lshl_b32 s44, s44, 14')
    p.e(f's_mul_i32 s{sKo}, s{sHH}, {KV_HEAD}')
    p.e(f's_add_u32 s{sKo}, s{sKo}, s44')
    p.e(f's_add_u32 s{sVo}, s{sKo}, {32768 + 8192}')
    a = acc
    for i in range(4):
        p.e(f'v_lshlrev_b32 v{a+2*i}, 16, v{st+i}')
        p.e(f'v_and_b32 v{a+2*i+1}, 0xffff0000, v{st+i}')
    sm = a + 8; tt = a + 9; mb = a + 10; d = a + 12
    p.e(f'v_add_f32 v{sm}, v{a}, v{a+1}')
    for i in range(2, 8): p.e(f'v_add_f32 v{sm}, v{sm}, v{a+i}')
    wave_sum(p, sm, tt)
    p.e(f'v_mul_f32 v{sm}, 0x3b000000, v{sm}')
    for i in range(8): p.e(f'v_sub_f32 v{d+i}, v{a+i}, v{sm}')
    p.e(f'v_mov_b32 v{mb}, v{sm}')
    p.e(f'v_mul_f32 v{sm}, v{d}, v{d}')
    for i in range(1, 8): p.e(f'v_fmac_f32 v{sm}, v{d+i}, v{d+i}')
    wave_sum(p, sm, tt)
    p.e(f'v_mul_f32 v{sm}, 0x3b000000, v{sm}')
    rne_bf16(p, sm); rne_bf16(p, mb)
    p.e(f'v_add_f32 v{sm}, 0x3727c5ac, v{sm}')
    rne_bf16(p, sm)
    p.e(f'v_sqrt_f32 v{sm}, v{sm}')
    rne_bf16(p, sm)
    p.e(f'v_rcp_f32 v{sm}, v{sm}')
    for i in range(8): p.e(f'v_sub_f32 v{d+i}, v{a+i}, v{mb}')
    for i in range(4): p.e(f'v_cvt_pk_bf16_f32 v{a+i}, v{d+2*i}, v{d+2*i+1}')
    for i in range(4):
        p.e(f'v_lshlrev_b32 v{d+2*i}, 16, v{a+i}')
        p.e(f'v_and_b32 v{d+2*i+1}, 0xffff0000, v{a+i}')
    for i in range(8): p.e(f'v_mul_f32 v{d+i}, v{d+i}, v{sm}')
    for i in range(4): p.e(f'v_cvt_pk_bf16_f32 v{st+i}, v{d+2*i}, v{d+2*i+1}')
    p.e(f'v_lshrrev_b32 v{t0}, 1, v{lane}')
    p.e(f'v_lshlrev_b32 v{t0}, 10, v{t0}')
    p.e(f'v_and_b32 v{t1}, 1, v{lane}')
    p.e(f'v_lshl_add_u32 v{t0}, v{t1}, 9, v{t0}')
    p.e(f's_lshr_b32 s44, s46, 5')
    p.e(f's_lshl_b32 s44, s44, 15')
    p.e(f's_and_b32 s45, s46, 31')
    p.e(f's_lshl_b32 s45, s45, 4')
    p.e(f's_add_u32 s44, s44, s45')
    p.e(f's_add_u32 s44, s44, {XN_OFF}')
    p.e(f'buffer_store_dwordx4 {vr(st,4)}, v{t0}, s[{S_WS}:{S_WS+3}], s44 offen{STORE_MOD}')
    ops = []
    for t in range(16):
        S = t % 8
        if S in (0, 7): order = [(dt, j4) for dt in range(4) for j4 in range(4)]
        else: order = [(dt, j4) for j4 in range(4) for dt in range(4)]
        for dt, j4 in order: ops.append((t, dt, j4))
    NOPS = len(ops)
    def rd_w(n):
        t, dt, j4 = ops[n]
        r = wf + 4 * (n % RING)
        for sec in range(2):
            p.e(f'ds_read_b64_tr_b16 {vr(r+2*sec,2)}, v{vWr+dt} offset:{WSLOT(t) + (16*j4+4*sec)*256}')
    def rd_c(t):
        p.need(f'C{t}')
        for j4 in range(4):
            p.e(f'ds_read_b128 {vr(cf+(t*4+j4)*4,4)}, v{vCr+j4} offset:{(t%3)*4096}')
    def epi(pas, dt):
        s = st + 8 * (dt & 1)
        for i in range(8):
            p.e(f'v_cvt_pk_bf16_f32 v{s+i}, v{acc+16*dt+2*i}, v{acc+16*dt+2*i+1}')
        for g in range(2):
            off = (2*dt + g) * 1024 if pas == 0 else (g*4 + dt) * 1024
            so = sKo if pas == 0 else sVo
            p.e(f'buffer_store_dwordx4 {vr(s+4*g,4)}, v{vSt + off//4096}, s[{S_WS}:{S_WS+3}], s{so} offen offset:{off%4096}{STORE_MOD}')
    T.stamp()
    p.need('W0')
    p.e('s_barrier')
    T.stamp()
    rd_c(0)
    for n in range(DIST): rd_w(n)
    for n in range(NOPS):
        t, dt, j4 = ops[n]
        S = t % 8
        first = (S == 0 and j4 == 0)
        c = '0' if first else vr(acc+16*dt, 16)
        w_ = vr(wf + 4*(n % RING), 4); c_ = vr(cf + (S*4+j4)*4, 4)
        if t < 8: p.e(f'{MF} {vr(acc+16*dt,16)}, {w_}, {c_}, {c}')
        else:     p.e(f'{MF} {vr(acc+16*dt,16)}, {c_}, {w_}, {c}')
        if n % 64 == 63: T.stamp()
        m = n + DIST
        if m < NOPS:
            if ops[m][0] != ops[m-1][0]:
                tn = ops[m][0]
                p.need(f'W{tn}')
                p.e('s_barrier')
                if tn + 2 < 16: dma_stage(tn + 2)
                if tn < 8: rd_c(tn)
            rd_w(m)
        for pas in range(2):
            for d_ in range(4):
                done = (pas*8 + 7) * 16 + 4*d_ + 3
                if n == min(done + 5, NOPS - 1) and not (pas == 1 and done + 5 > NOPS - 1):
                    epi(pas, d_)
    for d_ in range(4):
        done = 15 * 16 + 4*d_ + 3
        if done + 5 > NOPS - 1: epi(1, d_)
    T.stamp()
    T.flush(36, sW, t0, t1)
    p.e('k1_end:')
    p.e('s_endpgm')
    p.finalize([name])
    return name, p.text(), V.hi
```

```python
from common import *
import math, struct

def f32hex(x):
    return '0x%08x' % struct.unpack('<I', struct.pack('<f', x))[0]

def gen_k2(STORE_MOD='', STAMP=False, THR=2.0**20):
    p = Prog()
    T = Stamps(p, STAMP, base=70, kidx=1)
    name = 'k2_kernel'
    V = Regs('v', 1, 256)
    lane16 = V.alloc(); vB = V.alloc(); t0 = V.alloc(); t1 = V.alloc(); t2 = V.alloc(); t3 = V.alloc()
    vZ = V.alloc(); vNinf = V.alloc(); vLo = V.alloc(); vL = V.alloc(); ps = V.alloc(2); lane16b = V.alloc()
    vWr = V.alloc(8); vGr = V.alloc(6); vWd = V.alloc(); vGd = V.alloc(); vUd = V.alloc()
    wf = V.alloc(32, 4)
    accQ = V.alloc(64, 4)
    accG = V.alloc(48, 4)
    xf = V.alloc(64, 4)
    Qf = accQ
    O = [accQ + 32, accQ + 48, accG, accG + 16]
    E = accG + 32
    Sb = [xf, xf + 16]; negm = xf + 32; Pb = [xf + 48, xf + 56]
    sW, sHH, sU, sM0W, sM0G, sT = 3, 4, 5, 6, 7, 40
    S_WQ, S_G, S_UP, S_WS, S_KV = 8, 12, 16, 20, 24
    sXo, sAFo, sRole, sNB, sBt, sP, sRet, sSlot, sDma, sM0D, sTmp, sH2, sUm1, sKVb = 41, 42, 43, 44, 45, 46, 47, 48, 49, 50, 51, 52, 53, 54
    sMask = 56
    OOB = 0x7f000000
    QSCALE = math.log2(math.e) / math.sqrt(128.0)
    DIST = 6
    p.e(f'{name}:')
    p.e('s_cmp_ge_u32 s2, 256')
    p.e('s_cbranch_scc1 k2_end')
    T.rt(); T.stamp()
    p.e('s_load_dwordx2 s[28:29], s[0:1], 16')
    p.e('s_load_dwordx4 s[32:35], s[0:1], 56')
    p.e('s_load_dwordx2 s[36:37], s[0:1], 96')
    p.e(f'v_and_b32 v{t3}, 63, v0')
    p.e(f'v_lshrrev_b32 v{t0}, 6, v0')
    p.e(f'v_readfirstlane_b32 s{sW}, v{t0}')
    p.e(f's_and_b32 s{sHH}, s2, 7')
    p.e(f's_lshl_b32 s{sHH}, s{sHH}, 2')
    p.e(f's_bfe_u32 s{sT}, s2, 0x20003')
    p.e(f's_add_u32 s{sHH}, s{sHH}, s{sT}')
    p.e(f's_lshr_b32 s{sTmp}, s2, 5')
    p.e(f's_sub_u32 s{sT}, 15, s{sTmp}')
    p.e(f's_lshl_b32 s{sNB}, s{sT}, 1')
    p.e(f's_add_u32 s{sNB}, s{sNB}, 2')
    p.e(f's_lshr_b32 s{sRole}, s{sW}, 2')
    p.e(f's_cmp_eq_u32 s{sRole}, 0')
    p.e(f's_cselect_b32 s{sU}, s{sTmp}, s{sT}')
    p.e(f's_lshl_b32 s{sU}, s{sU}, 2')
    p.e(f's_and_b32 s{sT}, s{sW}, 3')
    p.e(f's_add_u32 s{sU}, s{sU}, s{sT}')
    p.e(f'v_lshlrev_b32 v{lane16}, 4, v{t3}')
    p.e(f's_lshl_b32 s{sXo}, s{sU}, 15')
    p.e(f's_add_u32 s{sXo}, s{sXo}, {XN_OFF}')
    p.e(f'v_lshrrev_b32 v{t0}, 4, v{t3}')
    p.e(f'v_bfe_u32 v{t1}, v{t3}, 2, 2')
    p.e(f'v_xor_b32 v{t1}, v{t1}, v{t0}')
    p.e(f'v_lshlrev_b32 v{t1}, 6, v{t1}')
    p.e(f'v_lshl_add_u32 v{t1}, v{t0}, 13, v{t1}')
    p.e(f'v_and_b32 v{t2}, 3, v{t3}')
    p.e(f'v_lshl_add_u32 v{t1}, v{t2}, 4, v{t1}')
    p.e(f's_lshl_b32 s{sT}, s{sHH}, 8')
    p.e(f's_lshl_b32 s{sTmp}, s{sW}, 16')
    p.e(f's_add_u32 s{sT}, s{sT}, s{sTmp}')
    p.e(f'v_add_u32 v{vWd}, s{sT}, v{t1}')
    p.e(f's_lshl_b32 s{sM0W}, s{sW}, 11')
    p.e(f's_lshl_b32 s{sM0G}, s{sW}, 10')
    p.e(f's_add_u32 s{sM0G}, s{sM0G}, 16384')
    srd(p, S_WS, 36, WS_USED)
    srd(p, S_WQ, 28, 0x400000)
    def xload(c):
        for j in range(4):
            if j == 0: p.e(f's_add_u32 s{sT}, s{sXo}, {c*4096}')
            p.e(f'buffer_load_dwordx4 {vr(xf + (c%4)*16 + 4*j, 4)}, v{lane16}, s[{S_WS}:{S_WS+3}], s{sT} offen offset:{j*1024}')
    def dma_wq(c):
        for i in range(2):
            p.e(f's_add_u32 m0, s{sM0W}, {(c%4)*32768 + i*1024}')
            p.e(f's_mov_b32 s{sT}, {c*64*8192 + i*32768}')
            p.e(f'buffer_load_dwordx4 v{vWd}, s[{S_WQ}:{S_WQ+3}], s{sT} offen lds', tokw=[f'st{c}'])
    def dma_gu(c):
        p.e(f's_add_u32 m0, s{sM0G}, {(c%4)*32768}')
        p.e(f's_mov_b32 s{sT}, {c*64*2752}')
        p.e(f'buffer_load_dwordx4 v{vGd}, s[{S_G}:{S_G+3}], s{sT} offen lds', tokw=[f'st{c}'])
        p.e(f's_add_u32 m0, s{sM0G}, {(c%4)*32768 + 8192}')
        p.e(f'buffer_load_dwordx4 v{vUd}, s[{S_UP}:{S_UP+3}], s{sT} offen lds', tokw=[f'st{c}'])
    def dma_kv_all(t):
        g = 8 + t
        p.e(f's_lshl_b32 s{sT}, s{sW}, 12')
        p.e(f's_add_u32 m0, s{sT}, {(g%4)*32768}')
        p.e(f's_add_u32 s{sT}, s{sT}, s{sKVb}')
        p.e(f's_add_u32 s{sT}, s{sT}, {t*32768}')
        for j in range(4):
            p.e(f'buffer_load_dwordx4 v{lane16}, s[{S_KV}:{S_KV+3}], s{sT} offen offset:{j*1024} lds', tokw=[f'st{g}'])
    dma_wq(0)
    xload(0)
    p.e(f's_mul_i32 s{sT}, s{sHH}, 3')
    p.e(f's_lshl_b32 s{sTmp}, s{sHH}, 1')
    p.e(f's_add_u32 s{sTmp}, s{sTmp}, 22')
    p.e(f's_cmp_lt_u32 s{sHH}, 22')
    p.e(f's_cselect_b32 s{sH2}, s{sT}, s{sTmp}')
    p.e(f's_cselect_b32 s{sP}, 3, 2')
    p.e(f'v_lshrrev_b32 v{t0}, 3, v{t3}')
    p.e(f's_lshl_b32 s{sT}, s{sW}, 3')
    p.e(f'v_add_u32 v{t0}, s{sT}, v{t0}')
    p.e(f'v_mul_u32_u24 v{t0}, 2752, v{t0}')
    p.e(f'v_and_b32 v{t1}, 1, v{t3}')
    p.e(f'v_lshl_add_u32 v{t0}, v{t1}, 4, v{t0}')
    p.e(f's_lshl_b32 s{sT}, s{sH2}, 5')
    p.e(f'v_add_u32 v{t0}, s{sT}, v{t0}')
    p.e(f'v_bfe_u32 v{t1}, v{t3}, 1, 2')
    p.e(f'v_bfe_u32 v{t2}, v{t3}, 4, 1')
    p.e(f'v_lshlrev_b32 v{t2}, 1, v{t2}')
    p.e(f'v_xor_b32 v{t1}, v{t1}, v{t2}')
    p.e(f'v_mov_b32 v{t2}, {OOB:#x}')
    p.e(f'v_lshl_add_u32 v{vGd}, v{t1}, 5, v{t0}')
    p.e(f'v_cmp_gt_u32 vcc, s{sP}, v{t1}')
    p.e(f'v_cndmask_b32 v{vGd}, v{t2}, v{vGd}, vcc')
    p.e(f'v_xor_b32 v{t1}, 1, v{t1}')
    p.e(f'v_lshl_add_u32 v{vUd}, v{t1}, 5, v{t0}')
    p.e(f'v_cmp_gt_u32 vcc, s{sP}, v{t1}')
    p.e(f'v_cndmask_b32 v{vUd}, v{t2}, v{vUd}, vcc')
    srd(p, S_G, 32, 512*2752)
    srd(p, S_UP, 34, 512*2752)
    dma_gu(0)
    dma_wq(1); dma_gu(1); xload(1)
    p.e(f'v_bfe_u32 v{t0}, v{t3}, 2, 2')
    p.e(f'v_lshrrev_b32 v{t1}, 5, v{t3}')
    p.e(f'v_lshl_add_u32 v{t1}, v{t1}, 3, v{t0}')
    p.e(f'v_and_b32 v{t2}, 3, v{t3}')
    p.e(f'v_lshlrev_b32 v{t2}, 3, v{t2}')
    p.e(f'v_lshl_add_u32 v{vWr}, v{t1}, 8, v{t2}')
    p.e(f'v_lshl_add_u32 v{vWr}, v{t0}, 6, v{vWr}')
    p.e(f'v_bfe_u32 v{t0}, v{t3}, 4, 1')
    p.e(f'v_lshl_add_u32 v{vWr}, v{t0}, 5, v{vWr}')
    for dt in range(1, 4): p.e(f'v_xor_b32 v{vWr+dt}, {dt*64}, v{vWr}')
    for dt in range(4): p.e(f'v_add_u32 v{vWr+4+dt}, 0x10000, v{vWr+dt}')
    p.e(f'v_lshl_add_u32 v{vGr}, v{t1}, 7, v{t2}')
    p.e(f'v_lshl_add_u32 v{vGr}, v{t0}, 13, v{vGr}')
    p.e(f'v_bfe_u32 v{t1}, v{t3}, 3, 1')
    p.e(f'v_lshl_add_u32 v{t1}, v{t1}, 1, v{t0}')
    p.e(f'v_lshl_add_u32 v{vGr}, v{t1}, 5, v{vGr}')
    p.e(f'v_add_u32 v{vGr}, 0x4000, v{vGr}')
    for j in range(1, 3): p.e(f'v_xor_b32 v{vGr+j}, {j*32}, v{vGr}')
    for j in range(3): p.e(f'v_add_u32 v{vGr+3+j}, 0x10000, v{vGr+j}')
    p.e(f'v_and_b32 v{vZ}, 31, v{t3}')
    p.e(f'v_lshrrev_b32 v{t1}, 5, v{t3}')
    p.e(f'v_lshlrev_b32 v{t1}, 2, v{t1}')
    p.e(f'v_sub_u32 v{vZ}, v{vZ}, v{t1}')
    p.e(f'v_mov_b32 v{vNinf}, 0xff800000')
    p.e(f'v_mov_b32 v{vLo}, 0xff800000')
    p.e(f'v_mov_b32 v{vL}, 0')
    p.e(f'v_add_u32 v{lane16b}, 0x1000, v{lane16}')
    p.e(f'v_mov_b32 v{vB}, v{lane16}')
    srd(p, S_KV, 36, 32*KV_HEAD)
    p.e(f's_mul_i32 s{sKVb}, s{sHH}, {KV_HEAD}')
    p.e(f's_mul_i32 s{sAFo}, s{sU}, {AF_QT}')
    p.e(f's_add_u32 s{sAFo}, s{sAFo}, {AF_OFF}')
    p.e(f's_add_u32 s{sH2}, s{sH2}, 256')
    p.e(f's_lshl_b32 s{sH2}, s{sH2}, 10')
    p.e(f's_add_u32 s{sH2}, s{sH2}, s{sAFo}')
    p.e(f's_cmp_eq_u32 s{sP}, 3')
    p.e(f's_cselect_b32 s{sRet}, s{sH2}, {OOB:#x}')
    p.e(f's_sub_u32 s{sUm1}, s{sU}, 1')
    p.e(f's_mov_b32 s{sBt}, 0')
    p.e(f's_mov_b32 s{sSlot}, 0')
    p.e(f's_lshl_b32 s{sT}, s{sW}, 13')
    p.e(f's_add_u32 s{sDma}, s{sKVb}, s{sT}')
    p.e(f's_add_u32 s{sDma}, s{sDma}, {3*32768}')
    p.e(f's_add_u32 s{sM0D}, s{sT}, {3*32768}')
    T.stamp()
    ops = []
    for c in range(8):
        if c == 7: order = [(tl, j4) for tl in range(7) for j4 in range(4)]
        else: order = [(tl, j4) for j4 in range(4) for tl in range(7)]
        for tl, j4 in order: ops.append(('g', c, tl, j4))
    for u in range(2):
        for f in range(8): ops.append(('k', 8, u, f))
    NOPS = len(ops)
    def acc_of(tl): return accQ + 16*tl if tl < 4 else accG + 16*(tl-4)
    def rd(n):
        kind, c, a, b = ops[n]
        r = wf + 4 * (n % 8)
        if kind == 'g':
            tl, j4 = a, b
            hi = (c % 4) // 2; so = (c % 2) * 32768
            for sec in range(2):
                if tl < 4: p.e(f'ds_read_b64_tr_b16 {vr(r+2*sec,2)}, v{vWr+4*hi+tl} offset:{so + (16*j4+4*sec)*256}')
                else:      p.e(f'ds_read_b64_tr_b16 {vr(r+2*sec,2)}, v{vGr+3*hi+tl-4} offset:{so + (16*j4+4*sec)*128}')
        else:
            p.e(f'ds_read_b128 {vr(r,4)}, v{vB} offset:{a*16384 + b*1024}')
    def q_epi(dt):
        a = accQ + 16*dt
        for i in range(16): p.e(f'v_mul_f32 v{a+i}, {f32hex(QSCALE)}, v{a+i}')
        for i in range(8): p.e(f'v_cvt_pk_bf16_f32 v{Qf+8*dt+i}, v{a+2*i}, v{a+2*i+1}')
    def h_epi(j):
        a = accG + 16*j
        for i in range(8): p.e(f'v_max_f32 v{a+i}, 0, v{a+i}')
        for i in range(8): p.e(f'v_mul_f32 v{a+i}, v{a+i}, v{a+8+i}')
        for i in range(4): p.e(f'v_cvt_pk_bf16_f32 v{a+8+i}, v{a+2*i}, v{a+2*i+1}')
        so = sH2 if j < 2 else sRet
        p.e(f'buffer_store_dwordx4 {vr(a+8,4)}, v{lane16}, s[{S_WS}:{S_WS+3}], s{so} offen offset:{j*1024}{STORE_MOD}')
    def zero(b, n):
        for i in range(n): p.e(f'v_mov_b32 v{b+i}, 0')
    mcount = [0]
    def mask_if(cond_sreg, val):
        k = mcount[0]; mcount[0] += 1
        p.e(f's_cmp_lg_u32 s{cond_sreg}, {val}')
        p.e(f's_cbranch_scc1 k2_nomask{k}')
        mask()
        p.e(f'k2_nomask{k}:')
    def mask():
        for r0 in range(0, 16, 4):
            for r in range(r0, r0+4):
                c = (r & 3) + 8 * (r >> 2)
                m = sMask + 2*(r & 3)
                p.e(f'v_cmp_gt_i32 s[{m}:{m+1}], {c}, v{vZ}')
            for r in range(r0, r0+4):
                m = sMask + 2*(r & 3)
                p.e(f'v_cndmask_b32 v{negm+r}, v{negm+r}, v{vNinf}, s[{m}:{m+1}]')
    p.need('st0')
    p.e('s_barrier')
    T.stamp()
    for n in range(DIST): rd(n)
    dma_wq(2); dma_gu(2); xload(2)
    L7 = 7 * 28
    for n in range(NOPS):
        kind, c, a, b = ops[n]
        fr = vr(wf + 4*(n % 8), 4)
        if kind == 'g':
            tl, j4 = a, b
            ac = vr(acc_of(tl), 16)
            cc = '0' if (c == 0 and j4 == 0) else ac
            p.e(f'{MF} {ac}, {fr}, {vr(xf + (c%4)*16 + 4*j4, 4)}, {cc}')
        else:
            u, f = a, b
            if f == 0: mask_if(sU, u)
            sb = vr(Sb[u], 16)
            cc = vr(negm, 16) if f == 0 else sb
            p.e(f'{MF} {sb}, {fr}, {vr(Qf + 4*f, 4)}, {cc}')
        m = n + DIST
        if m < NOPS:
            if ops[m][1] != ops[m-1][1]:
                g = ops[m][1]
                p.need(f'st{g}')
                p.e('s_barrier')
                if g + 2 < 8: dma_wq(g+2); dma_gu(g+2)
                else: dma_kv_all(g + 2 - 8)
                if g + 2 < 8: xload(g + 2)
                if g == 4: T.stamp()
            rd(m)
        for dt in range(4):
            if n == L7 + 4*dt + 3 + 4: q_epi(dt)
        if n == L7 + 2: zero(negm, 16)
        if n == L7 + 27: T.stamp()
        if n == L7 + 28 + 1: h_epi(0)
        if n == L7 + 28 + 4: h_epi(1)
        if n == L7 + 28 + 7: h_epi(2)
        if n == L7 + 28 + 9: zero(O[0], 32)
        if n == L7 + 28 + 12: zero(O[2], 32)
    bcount = [0]
    def dma_loader():
        p.e(f's_add_u32 s{sT}, s{sBt}, 3')
        p.e(f's_cmp_le_u32 s{sT}, s{sNB}')
        p.e(f's_cselect_b32 s{sT}, s{sDma}, {OOB:#x}')
        p.e(f's_mov_b32 m0, s{sM0D}')
        p.e(f's_add_u32 s{sDma}, s{sDma}, 32768')
        for j in range(4):
            p.e(f'buffer_load_dwordx4 v{lane16}, s[{S_KV}:{S_KV+3}], s{sT} offen offset:{j*1024} lds')
        p.e(f's_add_u32 m0, s{sM0D}, 4096')
        p.e(f's_add_u32 s{sM0D}, s{sM0D}, 32768')
        for j in range(4):
            p.e(f'buffer_load_dwordx4 v{lane16b}, s[{S_KV}:{S_KV+3}], s{sT} offen offset:{j*1024} lds')
        p.e(f's_and_b32 s{sM0D}, s{sM0D}, 0x1ffff')
    def bar_site(first=False):
        k = bcount[0]; bcount[0] += 1
        if first: p.need('st9', 'st10')
        else: p.e('s_waitcnt vmcnt(8)')
        p.e('s_barrier')
        p.e(f's_cmp_lg_u32 s{sRole}, 0')
        p.e(f's_cbranch_scc1 k2_nodma{k}')
        dma_loader()
        p.e(f'k2_nodma{k}:')
        p.e(f's_add_u32 s{sBt}, s{sBt}, 1')
    def slot_salu():
        p.e(f's_add_u32 s{sSlot}, s{sSlot}, 32768')
        p.e(f's_and_b32 s{sSlot}, s{sSlot}, 0x1ffff')
    def slot_valu():
        p.e(f'v_add_u32 v{vB}, s{sSlot}, v{lane16}')
    def rdf(slot, off):
        p.e(f'ds_read_b128 {vr(wf+4*slot,4)}, v{vB} offset:{off}')
    slot_salu(); slot_valu()
    bar_site(first=True)
    for f in range(8): rdf(f, f*1024)
    p.e(f's_mov_b32 s{sRet}, 2')
    p.e(f's_mov_b32 s{sP}, 0')
    T.stamp()
    p.e('s_branch k2_fix0')
    p.e('k2_ret_p0:')
    p.e(f's_mov_b32 s{sRet}, 0')
    p.e(f'v_mov_b32 v{ps+1}, 0')
    p.e(f's_cmp_lg_u32 s{sU}, 0')
    p.e('s_cbranch_scc1 k2_u_ge1')
    for f in range(8): rdf(f, 8192 + f*1024)
    p.e('s_branch k2_final0')
    p.e('k2_u_ge1:')
    p.e(f's_cmp_le_u32 s{sU}, 2')
    p.e('s_cbranch_scc1 k2_special1')
    def softmax_items(e):
        g = [[] for _ in range(16)]
        S = Sb[e]; P = Pb[e]; s_ = ps + e
        def ex(r): return f'v_exp_f32 v{E + r % 8}, v{S + r}'
        g[0] += [ex(0), ex(1)]
        for k in range(1, 15): g[k].append(ex(k + 1))
        g[1].append(f'v_add_f32 v{s_}, v{E}, v{E+1}')
        for k in range(2, 16): g[k].append(f'v_add_f32 v{s_}, v{s_}, v{E + k % 8}')
        for k in range(8): g[2*k+1].append(f'v_cvt_pk_bf16_f32 v{P+k}, v{E + (2*k) % 8}, v{E + (2*k+1) % 8}')
        g[2].append(f'v_add_f32 v{vL}, v{vL}, v{ps + 1 - e}')
        g[15].insert(1, f'v_cmp_lt_f32 vcc, {f32hex(THR)}, v{ps+e}')
        return g
    def check(e):
        p.e(f's_cbranch_vccnz k2_fix{e}')
    def full(e):
        g = softmax_items(e)
        voff = 8192 if e == 1 else 24576
        for i in range(16):
            s = i % 8
            if i % 2 == 1 and i + 1 < 16: p.need(*[f'v{wf+4*s+k}' for k in range(4)], *[f'v{wf+4*((s+1)%8)+k}' for k in range(4)])
            fr = vr(wf + 4*s, 4)
            if i < 8:
                sb = vr(Sb[1-e], 16)
                p.e(f'{MF} {sb}, {fr}, {vr(Qf+4*i,4)}, {vr(negm,16) if i == 0 else sb}')
            else:
                gg, dt = (i-8) // 4, (i-8) % 4
                p.e(f'{MF} {vr(O[dt],16)}, {fr}, {vr(Pb[1-e]+4*gg,4)}, {vr(O[dt],16)}')
            if e == 0 and i == 8: bar_site()
            if i < 8: rdf(s, voff + s*1024)
            else: rdf(s, (16384 if e == 1 else 0) + s*1024)
            if e == 0 and i == 7: slot_valu()
            for it in g[i]: p.e(it)
            if e == 0 and i == 4: slot_salu()
            if i == 10: p.e(f's_add_u32 s{sP}, s{sP}, 1')
            if i == 12:
                p.e(f's_add_u32 s{sT}, s{sP}, 2')
            if i == 14:
                p.e(f's_cmp_ge_u32 s{sT}, s{sU}')
        check(e)
    p.e('k2_full1:')
    full(1)
    p.e('k2_ret_full1:')
    p.e('s_cbranch_scc1 k2_special0')
    p.e('k2_full0:')
    full(0)
    p.e('k2_ret_full0:')
    p.e('s_cbranch_scc0 k2_full1')
    for e in (1, 0):
        p.e(f'k2_special{e}:')
        p.e(f's_cmp_eq_u32 s{sP}, s{sUm1}')
        p.e(f's_cbranch_scc1 k2_noqk{e}')
        mask()
        p.e(f's_branch k2_full{e}')
    def noqk(e):
        g = softmax_items(e)
        voff = 8192 if e == 1 else 24576
        p.e(f's_mov_b32 s{sRet}, 1')
        for s in range(8): rdf(s, voff + s*1024)
        if e == 0: slot_salu(); slot_valu()
        for i in range(8):
            for it in g[i]: p.e(it)
        for i in range(8, 16):
            s = i % 8
            gg, dt = (i-8) // 4, (i-8) % 4
            p.e(f'{MF} {vr(O[dt],16)}, {vr(wf+4*s,4)}, {vr(Pb[1-e]+4*gg,4)}, {vr(O[dt],16)}')
            if e == 0 and i == 8: bar_site()
            rdf(s, (24576 if e == 1 else 8192) + s*1024)
            for it in g[i]: p.e(it)
        check(e)
    def final(e):
        for s in range(8):
            gg, dt = s // 4, s % 4
            p.e(f'{MF} {vr(O[dt],16)}, {vr(wf+4*s,4)}, {vr(Pb[e]+4*gg,4)}, {vr(O[dt],16)}')
            if s == 0: p.e(f'v_add_f32 v{vL}, v{vL}, v{ps+e}')
    p.e('k2_noqk1:')
    noqk(1)
    p.e('k2_ret_noqk1:')
    final(1)
    p.e('s_branch k2_fin')
    p.e('k2_noqk0:')
    noqk(0)
    p.e('k2_ret_noqk0:')
    p.e('k2_final0:')
    final(0)
    p.e('k2_fin:')
    p.e(f's_cmp_ge_u32 s{sBt}, s{sNB}')
    p.e('s_cbranch_scc1 k2_epi')
    bar_site()
    p.e('k2_epi:')
    T.stamp()
    p.e(f'v_mov_b32 v{t0}, v{vL}')
    p.e(f'v_permlane32_swap_b32 v{vL}, v{t0}')
    p.e(f'v_add_f32 v{vL}, v{vL}, v{t0}')
    p.e(f'v_rcp_f32 v{vL}, v{vL}')
    p.e(f's_lshl_b32 s{sT}, s{sHH}, 13')
    p.e(f's_add_u32 s{sT}, s{sT}, s{sAFo}')
    for dt in range(4):
        for i in range(16): p.e(f'v_mul_f32 v{O[dt]+i}, v{O[dt]+i}, v{vL}')
        for i in range(8): p.e(f'v_cvt_pk_bf16_f32 v{Sb[0]+8*dt+i}, v{O[dt]+2*i}, v{O[dt]+2*i+1}')
        for gg in range(2):
            off = (2*dt+gg) * 1024
            p.e(f'buffer_store_dwordx4 {vr(Sb[0]+8*dt+4*gg,4)}, v{lane16 if off < 4096 else lane16b}, s[{S_WS}:{S_WS+3}], s{sT} offen offset:{off%4096}{STORE_MOD}')
    T.stamp()
    p.e(f's_cmp_lg_u32 s{sRole}, 0')
    p.e('s_cbranch_scc1 k2_done')
    p.e('k2_ldloop:')
    p.e(f's_cmp_ge_u32 s{sBt}, s{sNB}')
    p.e('s_cbranch_scc1 k2_done')
    p.e('s_waitcnt vmcnt(8)')
    p.e('s_barrier')
    dma_loader()
    p.e(f's_add_u32 s{sBt}, s{sBt}, 1')
    p.e('s_branch k2_ldloop')
    for e in (0, 1):
        S = Sb[e]; So = Sb[1-e]; P = Pb[e]; s_ = ps + e
        p.e(f'k2_fix{e}:')
        p.e(f'v_max3_f32 v{t0}, v{S}, v{S+1}, v{S+2}')
        for i in range(3, 15, 2): p.e(f'v_max3_f32 v{t0}, v{t0}, v{S+i}, v{S+i+1}')
        p.e(f'v_max_f32 v{t0}, v{t0}, v{S+15}')
        p.e(f'v_mov_b32 v{t1}, v{t0}')
        p.e(f'v_permlane32_swap_b32 v{t0}, v{t1}')
        p.e(f'v_max3_f32 v{t0}, v{t0}, v{t1}, v{vLo}')
        p.e(f'v_mov_b32 v{vLo}, 0')
        p.e(f'v_min_f32 v{t1}, -v{t0}, 0')
        p.e(f'v_exp_f32 v{t1}, v{t1}')
        for i in range(16): p.e(f'v_sub_f32 v{S+i}, v{S+i}, v{t0}')
        for i in range(16): p.e(f'v_exp_f32 v{S+i}, v{S+i}')
        for i in range(16): p.e(f'v_sub_f32 v{negm+i}, v{negm+i}, v{t0}')
        for i in range(16): p.e(f'v_sub_f32 v{So+i}, v{So+i}, v{t0}')
        p.e(f'v_add_f32 v{s_}, v{S}, v{S+1}')
        for i in range(2, 16): p.e(f'v_add_f32 v{s_}, v{s_}, v{S+i}')
        for i in range(8): p.e(f'v_cvt_pk_bf16_f32 v{P+i}, v{S+2*i}, v{S+2*i+1}')
        p.e(f'v_mul_f32 v{vL}, v{vL}, v{t1}')
        for dt in range(4):
            for i in range(16): p.e(f'v_mul_f32 v{O[dt]+i}, v{O[dt]+i}, v{t1}')
        p.e(f's_cmp_eq_u32 s{sRet}, 1')
        p.e(f's_cbranch_scc1 k2_ret_noqk{e}')
        if e == 0:
            p.e(f's_cmp_eq_u32 s{sRet}, 2')
            p.e('s_cbranch_scc1 k2_ret_p0')
        p.e(f's_add_u32 s{sT}, s{sP}, 2')
        p.e(f's_cmp_ge_u32 s{sT}, s{sU}')
        p.e(f's_branch k2_ret_full{e}')
    p.e('k2_done:')
    T.flush(36, sW, t0, t1, srd_at=96 if False else 60)
    p.e('k2_end:')
    p.e('s_endpgm')
    p.finalize([name])
    return name, p.text(), V.hi
```

```python
from common import *

def gen_k3(STAMP=False, D=8):
    p = Prog()
    T = Stamps(p, STAMP, base=70, kidx=2)
    name = 'k3_kernel'
    V = Regs('v', 1, 256)
    lane16 = V.alloc(); t0 = V.alloc(); t1 = V.alloc(); t2 = V.alloc(); t3 = V.alloc()
    vWd = V.alloc(); vWr = V.alloc(2); vXo = V.alloc(); vRw = V.alloc(); vRr = V.alloc()
    xin = V.alloc(4, 2)
    wf = V.alloc(16, 4)
    bf = V.alloc(8 * D, 4)
    acc = V.alloc(64, 4)
    red = V.alloc(64, 4)
    sW, sQT, sMT, sT, sKs0, sKs1, sM0, sAo, sWo, sCnt, sTmp = 3, 4, 5, 40, 41, 42, 43, 44, 45, 46, 47
    S_A0, S_A1, S_W, S_X, S_O = 8, 12, 16, 20, 24
    p.e(f'{name}:')
    p.e('s_cmp_ge_u32 s2, 256')
    p.e('s_cbranch_scc1 k3_end')
    T.rt(); T.stamp()
    p.e('s_load_dwordx2 s[28:29], s[0:1], 0')
    p.e('s_load_dwordx2 s[30:31], s[0:1], 40')
    p.e('s_load_dwordx4 s[32:35], s[0:1], 72')
    p.e('s_load_dwordx2 s[36:37], s[0:1], 96')
    p.e(f'v_and_b32 v{t3}, 63, v0')
    p.e(f'v_lshrrev_b32 v{t0}, 6, v0')
    p.e(f'v_readfirstlane_b32 s{sW}, v{t0}')
    p.e(f's_and_b32 s{sQT}, s2, 7')
    p.e(f's_lshl_b32 s{sQT}, s{sQT}, 2')
    p.e(f's_bfe_u32 s{sT}, s2, 0x20003')
    p.e(f's_add_u32 s{sQT}, s{sQT}, s{sT}')
    p.e(f's_lshr_b32 s{sMT}, s2, 5')
    p.e(f's_mul_i32 s{sKs0}, s{sW}, 43')
    p.e(f's_add_u32 s{sKs1}, s{sKs0}, 43')
    p.e(f's_cmp_ge_u32 s{sW}, 6')
    p.e(f's_cselect_b32 s{sT}, 2, 0')
    p.e(f's_cmp_eq_u32 s{sW}, 5')
    p.e(f's_cselect_b32 s{sT}, 1, s{sT}')
    p.e(f's_sub_u32 s{sKs0}, s{sKs0}, s{sT}')
    p.e(f's_cmp_ge_u32 s{sW}, 5')
    p.e(f's_cselect_b32 s{sT}, 2, 0')
    p.e(f's_cmp_eq_u32 s{sW}, 4')
    p.e(f's_cselect_b32 s{sT}, 1, s{sT}')
    p.e(f's_sub_u32 s{sKs1}, s{sKs1}, s{sT}')
    p.e(f'v_lshlrev_b32 v{lane16}, 4, v{t3}')
    p.e(f'v_lshrrev_b32 v{t0}, 3, v{t3}')
    p.e(f'v_bfe_u32 v{t1}, v{t3}, 2, 1')
    p.e(f'v_bfe_u32 v{t2}, v{t3}, 4, 1')
    p.e(f'v_xor_b32 v{t1}, v{t1}, v{t2}')
    p.e(f'v_lshlrev_b32 v{t1}, 6, v{t1}')
    p.e(f'v_lshl_add_u32 v{t1}, v{t0}, 10, v{t1}')
    p.e(f'v_and_b32 v{t2}, 3, v{t3}')
    p.e(f'v_lshl_add_u32 v{t1}, v{t2}, 4, v{t1}')
    p.e(f's_lshl_b32 s{sT}, s{sMT}, 7')
    p.e(f'v_add_u32 v{vWd}, s{sT}, v{t1}')
    p.e(f's_lshl_b32 s{sM0}, s{sW}, 14')
    p.e(f's_mul_i32 s{sT}, s{sQT}, {2*AF_QT}')
    p.e(f's_add_u32 s{sT}, s{sT}, {AF_OFF}')
    p.e(f's_add_u32 s{S_A0}, s36, s{sT}')
    p.e(f's_addc_u32 s{S_A0+1}, s37, 0')
    p.e(f's_and_b32 s{S_A0+1}, s{S_A0+1}, 0xffff')
    p.e(f's_lshl_b32 s{S_A0+2}, s{sKs1}, 10')
    p.e(f's_mov_b32 s{S_A0+3}, 0x20000')
    p.e(f's_add_u32 s{S_A1}, s{S_A0}, {AF_QT}')
    p.e(f's_addc_u32 s{S_A1+1}, s{S_A0+1}, 0')
    p.e(f's_mov_b32 s{S_A1+2}, s{S_A0+2}')
    p.e(f's_mov_b32 s{S_A1+3}, 0x20000')
    p.e(f's_cmp_ge_u32 s{sW}, 6')
    p.e(f's_cselect_b32 s{S_W}, s32, s30')
    p.e(f's_cselect_b32 s{S_W+1}, s33, s31')
    p.e(f's_cselect_b32 s{sT}, 256, 0')
    p.e(f's_and_b32 s{S_W+1}, s{S_W+1}, 0xffff')
    p.e(f's_sub_u32 s{sWo}, s{sKs0}, s{sT}')
    p.e(f's_lshl_b32 s{sWo}, s{sWo}, 14')
    p.e(f's_sub_u32 s{S_W+2}, s{sKs1}, s{sT}')
    p.e(f's_lshl_b32 s{S_W+2}, s{S_W+2}, 14')
    p.e(f's_mov_b32 s{S_W+3}, 0x20000')
    p.e(f's_lshl_b32 s{sAo}, s{sKs0}, 10')
    def issue(slot):
        p.e(f's_add_u32 m0, s{sM0}, {slot*2048}')
        p.e(f'buffer_load_dwordx4 {vr(bf+8*slot,4)}, v{lane16}, s[{S_A0}:{S_A0+3}], s{sAo} offen')
        p.e(f'buffer_load_dwordx4 v{vWd}, s[{S_W}:{S_W+3}], s{sWo} offen lds', tokw=[f'w{slot}'])
        p.e(f's_add_u32 m0, s{sM0}, {slot*2048+1024}')
        p.e(f's_add_u32 s{sT}, s{sWo}, 8192')
        p.e(f'buffer_load_dwordx4 {vr(bf+8*slot+4,4)}, v{lane16}, s[{S_A1}:{S_A1+3}], s{sAo} offen')
        p.e(f'buffer_load_dwordx4 v{vWd}, s[{S_W}:{S_W+3}], s{sT} offen lds', tokw=[f'w{slot}'])
        p.e(f's_add_u32 s{sAo}, s{sAo}, 1024')
        p.e(f's_add_u32 s{sWo}, s{sWo}, 16384')
    for s in range(D - 1): issue(s)
    p.e(f'v_bfe_u32 v{t0}, v{t3}, 2, 2')
    p.e(f'v_lshrrev_b32 v{t1}, 5, v{t3}')
    p.e(f'v_lshl_add_u32 v{t1}, v{t1}, 2, v{t0}')
    p.e(f'v_lshlrev_b32 v{t1}, 7, v{t1}')
    p.e(f'v_bfe_u32 v{t0}, v{t3}, 3, 1')
    p.e(f'v_lshl_add_u32 v{t1}, v{t0}, 6, v{t1}')
    p.e(f'v_bfe_u32 v{t0}, v{t3}, 4, 1')
    p.e(f'v_lshl_add_u32 v{t1}, v{t0}, 5, v{t1}')
    p.e(f'v_and_b32 v{t0}, 3, v{t3}')
    p.e(f'v_lshl_add_u32 v{t1}, v{t0}, 3, v{t1}')
    p.e(f'v_add_u32 v{vWr}, s{sM0}, v{t1}')
    p.e(f'v_xor_b32 v{vWr+1}, 64, v{vWr}')
    p.e(f's_bfe_u32 s{sT}, s{sW}, 0x10001')
    p.e(f's_lshl_b32 s{sTmp}, s{sQT}, 1')
    p.e(f's_add_u32 s{sT}, s{sT}, s{sTmp}')
    p.e(f's_lshl_b32 s{sT}, s{sT}, 15')
    p.e(f's_lshl_b32 s{sTmp}, s{sMT}, 7')
    p.e(f's_add_u32 s{sT}, s{sT}, s{sTmp}')
    p.e(f's_lshr_b32 s{sTmp}, s{sW}, 2')
    p.e(f's_lshl_b32 s{sTmp}, s{sTmp}, 6')
    p.e(f's_add_u32 s{sT}, s{sT}, s{sTmp}')
    p.e(f's_and_b32 s{sTmp}, s{sW}, 1')
    p.e(f's_lshl_b32 s{sTmp}, s{sTmp}, 5')
    p.e(f's_add_u32 s{sT}, s{sT}, s{sTmp}')
    p.e(f'v_and_b32 v{t0}, 31, v{t3}')
    p.e(f'v_lshlrev_b32 v{t0}, 10, v{t0}')
    p.e(f'v_lshrrev_b32 v{t1}, 5, v{t3}')
    p.e(f'v_lshl_add_u32 v{t0}, v{t1}, 3, v{t0}')
    p.e(f'v_add_u32 v{vXo}, s{sT}, v{t0}')
    srd(p, S_X, 28, 0x200000)
    srd(p, S_O, 34, 0x200000)
    p.e(f'buffer_load_dwordx2 {vr(xin,2)}, v{vXo}, s[{S_X}:{S_X+3}], 0 offen')
    p.e(f'buffer_load_dwordx2 {vr(xin+2,2)}, v{vXo}, s[{S_X}:{S_X+3}], 0 offen offset:16')
    p.e(f'v_add_u32 v{vRw}, s{sM0}, v{lane16}')
    p.e(f's_lshl_b32 s{sT}, s{sW}, 11')
    p.e(f'v_add_u32 v{vRr}, s{sT}, v{lane16}')
    for i in range(64): p.e(f'v_mov_b32 v{acc+i}, 0')
    T.stamp()
    def rdw(slot, par):
        p.need(f'w{slot}')
        for mt in range(2):
            for sec in range(2):
                p.e(f'ds_read_b64_tr_b16 {vr(wf+8*par+4*mt+2*sec,2)}, v{vWr+mt} offset:{slot*2048 + sec*1024}')
    rdw(0, 0)
    p.e(f's_mov_b32 s{sCnt}, {48 // D}')
    p.e('k3_loop:')
    for s in range(D):
        par = s % 2
        issue((s + D - 1) % D)
        rdw((s + 1) % D, 1 - par)
        for mt in range(2):
            for qt in range(2):
                a = vr(acc + 16*(2*mt+qt), 16)
                p.e(f'{MF} {a}, {vr(wf+8*par+4*mt,4)}, {vr(bf+8*s+4*qt,4)}, {a}')
    p.e(f's_sub_u32 s{sCnt}, s{sCnt}, 1')
    p.e(f's_cmp_lg_u32 s{sCnt}, 0')
    p.e('s_cbranch_scc1 k3_loop')
    T.stamp()
    p.e('s_waitcnt vmcnt(0) lgkmcnt(0)')
    for i in range(16):
        p.e(f'ds_write_b128 v{vRw}, {vr(acc+4*i,4)} offset:{i*1024}')
    p.e('s_waitcnt lgkmcnt(0)')
    p.e('s_barrier')
    T.stamp()
    p.e(f'v_add_u32 v{t0}, 0x10000, v{vRr}')
    for src in range(8):
        for c in range(2):
            p.e(f'ds_read_b128 {vr(red+8*src+4*c,4)}, v{vRr if src < 4 else t0} offset:{(src%4)*16384 + c*1024}')
    s_ = red; f_ = red + 48
    for src in range(1, 6):
        for i in range(8): p.e(f'v_add_f32 v{s_+i}, v{s_+i}, v{red+8*src+i}')
    for i in range(8): p.e(f'v_add_f32 v{f_+i}, v{f_+i}, v{red+56+i}')
    u = red + 8; xx = red + 16
    def rnd8(b):
        for i in range(4): p.e(f'v_cvt_pk_bf16_f32 v{u+i}, v{b+2*i}, v{b+2*i+1}')
        for i in range(4):
            p.e(f'v_lshlrev_b32 v{b+2*i}, 16, v{u+i}')
            p.e(f'v_and_b32 v{b+2*i+1}, 0xffff0000, v{u+i}')
    rnd8(s_); rnd8(f_)
    g_ = red + 24
    for i in range(8): p.e(f'v_mul_f32 v{g_+i}, 0xbfb8aa3b, v{f_+i}')
    for i in range(8): p.e(f'v_exp_f32 v{g_+i}, v{g_+i}')
    for i in range(8): p.e(f'v_add_f32 v{g_+i}, 1.0, v{g_+i}')
    for i in range(8): p.e(f'v_rcp_f32 v{g_+i}, v{g_+i}')
    for i in range(8): p.e(f'v_mul_f32 v{g_+i}, v{g_+i}, v{f_+i}')
    rnd8(g_)
    for i in range(8): p.e(f'v_mul_f32 v{g_+i}, v{g_+i}, v{s_+i}')
    rnd8(g_)
    for i in range(4):
        p.e(f'v_lshlrev_b32 v{xx+2*i}, 16, v{xin+i}')
        p.e(f'v_and_b32 v{xx+2*i+1}, 0xffff0000, v{xin+i}')
    for i in range(8): p.e(f'v_add_f32 v{g_+i}, v{g_+i}, v{xx+i}')
    for i in range(4): p.e(f'v_cvt_pk_bf16_f32 v{u+i}, v{g_+2*i}, v{g_+2*i+1}')
    p.e(f'buffer_store_dwordx2 {vr(u,2)}, v{vXo}, s[{S_O}:{S_O+3}], 0 offen')
    p.e(f'buffer_store_dwordx2 {vr(u+2,2)}, v{vXo}, s[{S_O}:{S_O+3}], 0 offen offset:16')
    T.stamp()
    T.flush(36, sW, t0, t1)
    p.e('k3_end:')
    p.e('s_endpgm')
    p.finalize([name])
    return name, p.text(), V.hi
```

```python
import sys
from common import *
from k1 import gen_k1
from k2 import gen_k2
from k3 import gen_k3
HEAD = open('recurrent_scan__compressed_kv_cla__glu_gated_reglu__prompt.s.ref').read().split('; Override launch')[0]
def build(kernels, out):
    s = HEAD
    for name, txt, nv, lds in kernels:
        s += f'; @launch kernel={name} grid=(256,1,1) block=(512,1,1) lds={lds}\n'
    s += '.amdgcn_target "amdgcn-amd-amdhsa--gfx950"\n'
    for name, txt, nv, lds in kernels:
        s += header(name) + txt
    for name, txt, nv, lds in kernels:
        s += kd(name, nv)
    open(out, 'w').write(s)
if __name__ == '__main__':
    ks = []
    n, t, v = gen_k1(STAMP=('stamp' in sys.argv), STORE_MOD=(' nt' if 'nt' in sys.argv else ' sc1' if 'sc1' in sys.argv else '')); ks.append((n, t, v, 163840))
    n, t, v = gen_k2(STAMP=('stamp' in sys.argv)); ks.append((n, t, v, 131072))
    n, t, v = gen_k3(STAMP=('stamp' in sys.argv)); ks.append((n, t, v, 131072))
    build(ks, sys.argv[1])
    for k in ks: print(k[0], 'vgpr', k[2], 'lines', k[1].count('\n'))
```
